```python
import torch

def _softmax(x, axis=-1):
    return torch.softmax(x, dim=axis)
def _gelu(x):
    return torch.nn.functional.gelu(x, approximate="tanh")
def _silu(x):
    return torch.nn.functional.silu(x)
def _sigmoid(x):
    return torch.sigmoid(x)
def _layernorm(x, axis=-1, eps=1e-5):
    m = x.mean(dim=axis, keepdim=True)
    v = x.var(dim=axis, keepdim=True, unbiased=False)
    return (x - m) / torch.sqrt(v + eps)
def _scatter_add(tgt, idx, src, axis=0):
    return tgt.clone().index_add_(axis, idx, src)
def _segment_sum(src, seg, n):
    out = torch.zeros((n,) + src.shape[1:], dtype=src.dtype)
    return out.index_add_(0, seg, src)
def _pad(x, pw):
    flat = tuple(v for pair in reversed(pw) for v in pair)
    return torch.nn.functional.pad(x, flat)

kernel_name = 'standalone__weight_only_int_squeezellm__prompt'

def setup_inputs():

    _w = (lambda a: (lambda t: t.to(torch.bfloat16) if t.is_floating_point() else t)(torch.as_tensor(a)))
    B, S, D, F = 1, 2048, 576, 4608
    bits = 3 if (2 <= 3 <= 4) else 4
    L = 2 ** bits
    qw = torch.randint(0, L, (D, F)).to(torch.int64)
    lut = (lambda *s: torch.randn(*s, dtype=torch.bfloat16) * 0.05)(L, F)
    return {
        "x": _w((lambda *s: torch.randn(*s, dtype=torch.bfloat16) * 0.05)(B, S, D)),
        "qw": _w(qw),
        "lut": _w(lut),
    }

def reference(x, qw, lut):
    w = (lambda x, i, axis: torch.take_along_dim(x, i, dim=axis))(lut, qw, axis=0)
    w = (lambda x, dt: x.to(dt))(w, x.dtype)
    return torch.einsum('bsd,df->bsf', x, w)
```

```python
M,K,N=2048,576,4608
NAME='standalone__weight_only_int_squeezellm__prompt_kernel'
def body(name):
    L=[]
    a=L.append
    a(f"""
  s_cmp_ge_u32 s2, 576
  s_cbranch_scc1 Lend_{name}
  s_load_dwordx4 s[4:7], s[0:1], 0
  s_load_dwordx4 s[8:11], s[0:1], 16
  s_waitcnt lgkmcnt(0)
  s_mov_b32 s16, s4
  s_mov_b32 s17, s5
  s_mov_b32 s18, {M*K*2}
  s_mov_b32 s19, 0x20000
  s_mov_b32 s20, s6
  s_mov_b32 s21, s7
  s_mov_b32 s22, {K*N*4}
  s_mov_b32 s23, 0x20000
  s_mov_b32 s24, s10
  s_mov_b32 s25, s11
  s_mov_b32 s26, {M*N*2}
  s_mov_b32 s27, 0x20000
  s_mov_b32 s28, s8
  s_mov_b32 s29, s9
  s_mov_b32 s30, {8*N*2}
  s_mov_b32 s31, 0x20000
  v_lshrrev_b32 v1, 6, v0
  v_and_b32 v2, 63, v0
  s_nop 0
  v_readfirstlane_b32 s10, v1
  s_and_b32 s11, s2, 7
  s_lshr_b32 s12, s2, 3
  s_lshl_b32 s11, s11, 2
  s_add_u32 s11, s11, s10
  v_and_b32 v3, 15, v2          ; c
  v_lshrrev_b32 v4, 4, v2       ; g
  s_mul_i32 s13, s11, {64*K*2}
  v_mul_u32_u24 v5, {K*2}, v3
  v_lshlrev_b32 v6, 4, v4
  v_add3_u32 v5, v5, v6, s13
  s_lshl_b32 s14, s12, 8
  v_mul_u32_u24 v7, {8*N*4}, v4
  v_lshlrev_b32 v6, 4, v3
  v_add3_u32 v7, v7, v6, s14
  s_lshl_b32 s15, s12, 7
  v_lshlrev_b32 v8, 3, v3
  v_add_u32 v8, s15, v8
""")
    for e in range(8):
        a(f"  s_mov_b32 s33, {e*N*2}\n  buffer_load_dwordx2 v[{16+2*e}:{17+2*e}], v8, s[28:31], s33 offen")
    a("  s_waitcnt vmcnt(0)")
    a("  s_mov_b32 s34, 0x05010400\n  s_mov_b32 s35, 0x07030602\n  s_mov_b32 s36, 0x05040100\n  s_mov_b32 s37, 0x07060302")
    for j in range(4):
        sel = 's34' if (j&1)==0 else 's35'
        for hf in range(2):
            e=4*hf
            r=lambda ee: 16+2*ee+(j>>1)
            a(f"  v_perm_b32 v48, v{r(e+1)}, v{r(e)}, {sel}")
            a(f"  v_perm_b32 v49, v{r(e+3)}, v{r(e+2)}, {sel}")
            a(f"  v_perm_b32 v{32+4*j+hf}, v49, v48, s36")
            a(f"  v_perm_b32 v{32+4*j+2+hf}, v49, v48, s37")
    for i in range(64): a(f"  v_accvgpr_write_b32 a{i}, 0")
    a(f"  s_mov_b32 s38, 0\n  s_mov_b32 s39, 0\nLk_{name}:")
    for i in range(8):
        a(f"  s_add_u32 s33, s39, {i*N*4}\n  buffer_load_dwordx4 v[{64+4*i}:{67+4*i}], v7, s[20:23], s33 offen")
    for t in range(4):
        a(f"  s_add_u32 s33, s38, {t*16*K*2}\n  buffer_load_dwordx4 v[{96+4*t}:{99+4*t}], v5, s[16:19], s33 offen")
    a("  s_waitcnt vmcnt(4)")
    for j in range(4):
        for hf in range(2):
            c=lambda i: 64+4*(4*hf+i)+j
            a(f"  v_lshl_or_b32 v48, v{c(1)}, 8, v{c(0)}")
            a(f"  v_lshl_or_b32 v49, v{c(3)}, 8, v{c(2)}")
            a(f"  v_lshl_or_b32 v48, v49, 16, v48")
            a(f"  v_perm_b32 v49, v{32+4*j+1}, v{32+4*j}, v48")
            a(f"  v_perm_b32 v50, v{32+4*j+3}, v{32+4*j+2}, v48")
            a(f"  v_perm_b32 v{112+4*j+2*hf}, v50, v49, s34")
            a(f"  v_perm_b32 v{112+4*j+2*hf+1}, v50, v49, s35")
    a("  s_waitcnt vmcnt(0)\n  s_nop 1")
    for t in range(4):
        for j in range(4):
            ac=16*t+4*j
            a(f"  v_mfma_f32_16x16x32_bf16 a[{ac}:{ac+3}], v[{96+4*t}:{99+4*t}], v[{112+4*j}:{115+4*j}], a[{ac}:{ac+3}]")
    a(f"  s_add_u32 s38, s38, 64\n  s_add_u32 s39, s39, {32*N*4}\n  s_cmp_lt_u32 s38, {K*2}\n  s_cbranch_scc1 Lk_{name}")
    a("  s_nop 15")
    a(f"  s_mul_i32 s13, s11, {64*N*2}\n  v_mul_u32_u24 v9, {4*N*2}, v4\n  v_add3_u32 v9, v9, v8, s13")
    for t in range(4):
        for r in range(4):
            for j in range(4): a(f"  v_accvgpr_read_b32 v{52+j}, a{16*t+4*j+r}")
            a("  v_cvt_pk_bf16_f32 v56, v52, v53\n  v_cvt_pk_bf16_f32 v57, v54, v55")
            a(f"  s_mov_b32 s33, {(16*t+r)*N*2}\n  buffer_store_dwordx2 v[56:57], v9, s[24:27], s33 offen\n  s_nop 1")
    a(f"Lend_{name}:\n  s_endpgm")
    return '\n'.join(L)

HDR=""".amdgcn_target "amdgcn-amd-amdhsa--gfx950"
.text
"""
def kern(name,b): return f".globl {name}\n.p2align 8\n.type {name},@function\n{name}:\n{b}\n"
def kd(name,vg,acc): return f""".p2align 6
.amdhsa_kernel {name}
  .amdhsa_next_free_vgpr {vg}
  .amdhsa_next_free_sgpr 102
  .amdhsa_accum_offset {acc}
  .amdhsa_group_segment_fixed_size 0
  .amdhsa_kernarg_size 48
  .amdhsa_user_sgpr_count 2
  .amdhsa_user_sgpr_kernarg_segment_ptr 1
  .amdhsa_system_sgpr_workgroup_id_x 1
.end_amdhsa_kernel
"""
def probe(name, argoff, nbytes, stride, n):
    return f"""
  s_cmp_ge_u32 s2, 1
  s_cbranch_scc1 Lend_{name}
  s_load_dwordx2 s[4:5], s[0:1], {argoff}
  s_waitcnt lgkmcnt(0)
  s_mov_b32 s16, s4
  s_mov_b32 s17, s5
  s_mov_b32 s18, {nbytes}
  s_mov_b32 s19, 0x20000
  v_mov_b32 v1, 0
  s_mov_b32 s6, {n}
Lp_{name}:
  buffer_load_dword v2, v1, s[16:19], 0 offen
  s_waitcnt vmcnt(0)
  v_and_b32 v2, 0, v2
  v_add_u32 v1, {stride}, v1
  v_add_u32 v1, v1, v2
  s_sub_u32 s6, s6, 1
  s_cmp_lg_u32 s6, 0
  s_cbranch_scc1 Lp_{name}
Lend_{name}:
  s_endpgm
"""
if __name__=='__main__':
    s="; @launch grid=(576,1,1) block=(256,1,1) lds=0\n"+HDR+kern(NAME,body('k'))+'.section .rodata,"a"\n'+kd(NAME,192,128)
    open('v0.s','w').write(s)
    for tag,(off,nb,st) in dict(q=(8,K*N*4,52352),x=(0,M*K*2,11648),o=(24,M*N*2,93312),w=(40,268435456,1048704),e=(8,K*N*4,0)).items():
        s="; @launch kernel=probe_kernel grid=(1,1,1) block=(64,1,1) lds=0\n; @launch kernel=gemm_kernel grid=(576,1,1) block=(256,1,1) lds=0\n"+HDR
        s+=kern('probe_kernel',probe('p',off,nb,st,200))+kern('gemm_kernel',body('k'))+'.section .rodata,"a"\n'+kd('probe_kernel',8,8)+kd('gemm_kernel',192,128)
        open(f'probe_{tag}.s','w').write(s)
```
